```python
import torch

def _softmax(x, axis=-1):
    return torch.softmax(x, dim=axis)
def _gelu(x):
    return torch.nn.functional.gelu(x, approximate="tanh")
def _silu(x):
    return torch.nn.functional.silu(x)
def _sigmoid(x):
    return torch.sigmoid(x)
def _layernorm(x, axis=-1, eps=1e-5):
    m = x.mean(dim=axis, keepdim=True)
    v = x.var(dim=axis, keepdim=True, unbiased=False)
    return (x - m) / torch.sqrt(v + eps)
def _scatter_add(tgt, idx, src, axis=0):
    return tgt.clone().index_add_(axis, idx, src)
def _segment_sum(src, seg, n):
    out = torch.zeros((n,) + src.shape[1:], dtype=src.dtype)
    return out.index_add_(0, seg, src)
def _pad(x, pw):
    flat = tuple(v for pair in reversed(pw) for v in pair)
    return torch.nn.functional.pad(x, flat)

kernel_name = 'parallel_sum__softmax_full_mha__glu_gated_glu__prompt'

def setup_inputs():

    _w = (lambda a: (lambda t: t.to(torch.bfloat16) if t.is_floating_point() else t)(torch.as_tensor(a)))
    def _A_setup():
        B, S, D = 1, 2048, 576
        return {
            "x": _w((lambda *s: torch.randn(*s, dtype=torch.bfloat16) * 0.05)(B, S, D)),
            "wqkv": _w((lambda *s: torch.randn(*s, dtype=torch.bfloat16) * 0.2)(D, 3 * D)),
            "wo": _w((lambda *s: torch.randn(*s, dtype=torch.bfloat16) * 0.1)(D, D)),
        }
    _A_in = _A_setup()

    def _B_setup():
        B, S, D, F = 1, 2048, 576, 4608
        return {
            "x": _w((lambda *s: torch.randn(*s, dtype=torch.bfloat16) * 0.05)(B, S, D)),
            "w_gate": _w((lambda *s: torch.randn(*s, dtype=torch.bfloat16) * 0.8)(D, F)),
            "w_up": _w((lambda *s: torch.randn(*s, dtype=torch.bfloat16) * 0.1)(D, F)),
            "w_down": _w((lambda *s: torch.randn(*s, dtype=torch.bfloat16) * 0.1)(F, D)),
        }
    _B_in = _B_setup()

    return {
        "A_x": _A_in["x"],
        "A_wqkv": _A_in["wqkv"],
        "A_wo": _A_in["wo"],
        "B_x": _B_in["x"],
        "B_w_gate": _B_in["w_gate"],
        "B_w_up": _B_in["w_up"],
        "B_w_down": _B_in["w_down"],
    }

def reference(A_x, A_wqkv, A_wo, B_x, B_w_gate, B_w_up, B_w_down):
    def _A_ref(x, wqkv, wo):
        B, S, D = x.shape
        H = 32; Dh = D // H
        qkv = (lambda x, *d: x.permute(*d))((x @ wqkv).reshape(B, S, 3, H, Dh), 2, 0, 3, 1, 4)
        q, k, v = qkv[0], qkv[1], qkv[2]
        scale = Dh ** -0.5
        scores = torch.einsum("bhqd,bhkd->bhqk", q, k) * scale
        p = _softmax(scores, axis=-1)
        o = torch.einsum("bhqk,bhkd->bhqd", p, v)
        return (lambda x, *d: x.permute(*d))(o, 0, 2, 1, 3).reshape(B, S, D) @ wo

    def _B_ref(x, w_gate, w_up, w_down):
        g = torch.einsum("bsd,df->bsf", x, w_gate)
        u = torch.einsum("bsd,df->bsf", x, w_up)
        h = _sigmoid(g) * u
        return torch.einsum("bsf,fd->bsd", h, w_down)

    x = A_x
    xn = _layernorm(x, axis=-1)
    return x + _A_ref(xn, A_wqkv, A_wo) + _B_ref(xn, B_w_gate, B_w_up, B_w_down)
```

```python
import struct
def f32(x):
    return '0x%08x' % struct.unpack('<I', struct.pack('<f', x))[0]

class K:
    def __init__(self, name):
        self.name = name
        self.lines = []
        self.nlab = 0
    def __call__(self, s):
        for l in s.strip('\n').split('\n'):
            l = l.strip()
            if not l: continue
            if l.endswith(':') or l.startswith('.'):
                self.lines.append(l)
            else:
                self.lines.append('    ' + l)
    def label(self, base):
        self.nlab += 1
        return f'L_{self.name[:6]}_{base}_{self.nlab}'
    def text(self):
        return '\n'.join(self.lines) + '\n'

def vr(b, n=1, p='v'):
    return f'{p}{b}' if n == 1 else f'{p}[{b}:{b+n-1}]'
def ar(b, n=1): return vr(b, n, 'a')
def sr(b, n=1): return vr(b, n, 's')

def header(k):
    return f""".globl {k.name}
.p2align 8
.type {k.name},@function
{k.name}:
"""
def descriptor(name, vgpr, accum, sgpr=102):
    return f""".p2align 6
.amdhsa_kernel {name}
  .amdhsa_next_free_vgpr {vgpr}
  .amdhsa_next_free_sgpr {sgpr}
  .amdhsa_accum_offset {accum}
  .amdhsa_group_segment_fixed_size 0
  .amdhsa_kernarg_size 80
  .amdhsa_user_sgpr_count 2
  .amdhsa_user_sgpr_kernarg_segment_ptr 1
  .amdhsa_system_sgpr_workgroup_id_x 1
.end_amdhsa_kernel
"""
def srd(k, d, b, nbytes):
    k(f"""s_mov_b32 s{d}, s{b}
    s_and_b32 s{d+1}, s{b+1}, 0xffff
    s_mov_b32 s{d+2}, {nbytes}
    s_mov_b32 s{d+3}, 0x20000""")
```

```python
from asmlib import *
from gen import *
import os
PRIO = os.environ.get('PRIO', 'none')
K2_F2 = 2 * KVCH
K2_LDS = K2_F2 + 4 * 3 * 9216
MARGIN = 64.0
PT = 36 * 1024
PHALF = 128 * PT

def k2_attn_ffn2():
    k = K('k2_kernel')
    k(f"""
    s_cmp_ge_u32 s2, 256
    s_cbranch_scc1 L_k2_end""")
    stamp(k, 0); stamp_rt(k, 5)
    k(f"""
    s_load_dwordx2 s[4:5], s[0:1], {KA_WD}
    s_load_dwordx2 s[6:7], s[0:1], {KA_WS}
    v_lshrrev_b32 v2, 6, v0
    v_and_b32 v0, 63, v0
    v_readfirstlane_b32 s24, v2
    v_lshlrev_b32 v1, 4, v0
    s_and_b32 s25, s2, 7
    s_lshr_b32 s26, s2, 3
    s_waitcnt lgkmcnt(0)
    """)
    srd(k, 20, 6, WS_USED)
    k("s_cmp_ge_u32 s24, 4\ns_cbranch_scc1 L_k2_ffn2")
    attention(k)
    k("L_k2_ffn2:")
    ffn2(k)
    k("L_k2_end:\ns_endpgm")
    return k, dict(vgpr=256, accum=256, grid=256, block=512, lds=K2_LDS)

def attention(k):
    Q1 = [16, 24]; Q2 = [20, 28]
    Sx = [32, 48]; Ox = [64, 80]; P = 96
    K1 = [104, 108]; K2 = [112, 116]; V0 = [120, 128]; V1 = [124, 132]
    M = [136, 137]
    aK, aT, aV = 3, 4, 5
    cK, cT, cV = 6, 7, 8
    T = 140
    k(f"""
    s_lshl_b32 s27, s25, 2
    s_and_b32 s3, s26, 3
    s_add_u32 s27, s27, s3
    s_lshr_b32 s28, s26, 2
    s_mul_i32 s31, s27, {8 * KVCH}
    s_add_u32 s31, s31, {KV_OFF}
    s_mul_i32 s30, s24, 5120
    s_add_u32 s29, s31, s30
    """)
    def kv_dma(bufsgpr_or_imm):
        L = [f"s_add_u32 m0, s30, {bufsgpr_or_imm}", "s_add_u32 s33, s29, 4096"]
        for i in range(4):
            L.append(f"buffer_load_dwordx4 v1, s[36:39], s29 offen offset:{i*1024} lds")
        L.append("s_add_u32 m0, m0, 4096")
        L.append(f"s_add_u32 s29, s29, {KVCH}")
        L.append("buffer_load_dwordx4 v1, s[36:39], s33 offen lds")
        return L
    srd(k, 36, 6, WS_USED)
    for l in kv_dma(0): k(l)
    k(f"""
    s_lshl_b32 s34, s27, 6
    s_lshl_b32 s3, s28, 3
    s_add_u32 s34, s34, s3
    s_lshl_b32 s3, s24, 1
    s_add_u32 s34, s34, s3
    s_lshl_b32 s34, s34, 10
    s_add_u32 s34, s34, {QF_OFF}
    buffer_load_dwordx4 {vr(Q1[0],4)}, v1, s[20:23], s34 offen
    buffer_load_dwordx4 {vr(Q1[1],4)}, v1, s[20:23], s34 offen offset:1024
    v_bfe_u32 v9, v0, 4, 1
    v_mul_u32_u24 v{aT}, 768, v9
    v_bfe_u32 v9, v0, 2, 1
    v_mul_u32_u24 v9, 384, v9
    v_add_u32 v{aT}, v{aT}, v9
    v_bfe_u32 v9, v0, 3, 1
    v_lshl_add_u32 v{aT}, v9, 3, v{aT}
    v_and_b32 v9, 3, v0
    v_lshl_add_u32 v{aT}, v9, 1, v{aT}
    v_lshrrev_b32 v9, 5, v0
    v_lshl_add_u32 v{aT}, v9, 4, v{aT}
    v_add_u32 v{aT}, {8192 + 320}, v{aT}
    s_mul_i32 s34, s28, {KVCH}
    s_add_u32 s34, s34, s31
    s_mul_i32 s3, s24, 3072
    s_add_u32 s34, s34, s3
    buffer_load_ushort v{Q2[0]}, v{aT}, s[20:23], s34 offen offset:32
    buffer_load_ushort v{Q2[1]}, v{aT}, s[20:23], s34 offen offset:{32 + 1536}
    """)
    for l in kv_dma(KVCH): k(l)
    k(f"""
    v_and_b32 v10, 31, v0
    v_min_u32 v11, 19, v10
    v_cmp_eq_u32 vcc, 22, v10
    v_mul_u32_u24 v{aV}, 384, v9
    v_mov_b32 v{aK}, v1
    v_cndmask_b32 v11, v11, 18, vcc
    v_lshl_add_u32 v{aV}, v11, 4, v{aV}
    v_add_u32 v{aV}, 8192, v{aV}
    v_mov_b32 v{cK}, v{aK}
    v_mov_b32 v{cT}, v{aT}
    v_mov_b32 v{cV}, v{aV}
    v_cmp_gt_u32 s[40:41], 32, v0
    """)
    for x in range(2):
        for r in (1, 2, 3): k(f"v_mov_b32 v{Q2[x]+r}, 0")
        k(f"v_mov_b32 v{K2[x]+1}, 0x3f80")
        for r in (2, 3): k(f"v_mov_b32 v{K2[x]+r}, 0")
        for r in range(16): k(f"v_mov_b32 v{Ox[x]+r}, 0")
        for r in range(4): k(f"v_mov_b32 v{V1[x]+r}, 0")
    for r in range(8): k(f"v_mov_b32 v{P+r}, 0")
    k(f"""
    s_mov_b32 s32, {KVCH}
    s_mov_b32 s35, 0
    s_mov_b32 s42, {f32(2.0**20)}
    s_waitcnt vmcnt(5)
    s_barrier
    """)
    stamp(k, 1)
    if STAMP: k("s_waitcnt lgkmcnt(0)")
    def rdK(t, p):
        return [f"ds_read_b128 {vr(K1[p],4)}, v{cK} offset:{t*1024}", f"ds_read_u16 v{K2[p]}, v{cT} offset:{t*1536}"]
    def rdV(t, p):
        return [f"ds_read_b128 {vr(V0[p],4)}, v{cV} offset:{t*1536}", f"ds_read_b128 {vr(V1[p],4)}, v{cV} offset:{t*1536+768}"]
    def qk1(x, p): return f"v_mfma_f32_32x32x16_bf16 {vr(Sx[x],16)}, {vr(K1[p],4)}, {vr(Q1[x],4)}, 0"
    def qk2(x, p): return f"v_mfma_f32_32x32x16_bf16 {vr(Sx[x],16)}, {vr(K2[p],4)}, {vr(Q2[x],4)}, {vr(Sx[x],16)}"
    def pv1(x, p): return f"v_mfma_f32_32x32x16_bf16 {vr(Ox[x],16)}, {vr(V0[p],4)}, {vr(P,4)}, {vr(Ox[x],16)}"
    def pv2(x, p): return f"v_mfma_f32_32x32x16_bf16 {vr(Ox[x],16)}, {vr(V1[p],4)}, {vr(P+4,4)}, {vr(Ox[x],16)}"
    def rowmax(x, dst, tmp):
        s = Sx[x]
        k(f"v_max3_f32 v{dst}, v{s}, v{s+1}, v{s+2}")
        for r in range(3, 15, 2): k(f"v_max3_f32 v{dst}, v{dst}, v{s+r}, v{s+r+1}")
        k(f"v_max_f32 v{dst}, v{dst}, v{s+15}")
        k(f"v_mov_b32 v{tmp}, v{dst}\ns_nop 1\nv_permlane32_swap_b32 v{dst}, v{tmp}\ns_nop 1\nv_max_f32 v{dst}, v{dst}, v{tmp}")
    def set_shift(x, src, tmp):
        k(f"""v_cvt_pk_bf16_f32 v{tmp}, v{src}, v{src}
        v_and_b32 v{M[x]}, 0xffff0000, v{tmp}
        v_lshrrev_b32 v{tmp}, 16, v{tmp}
        v_xor_b32 v{tmp}, 0x8000, v{tmp}
        v_cndmask_b32 v{Q2[x]+1}, 0, v{tmp}, s[40:41]""")
    for l in rdK(0, 0) + rdV(0, 0): k(l)
    k("s_waitcnt lgkmcnt(2)")
    for x in range(2): k(qk1(x, 0)); k(qk2(x, 0))
    k("s_nop 15")
    for x in range(2):
        rowmax(x, T, T + 1)
        k(f"v_rndne_f32 v{T}, v{T}\nv_add_f32 v{T}, {f32(MARGIN)}, v{T}")
        set_shift(x, T, T + 1)
    k("s_nop 1")
    k(qk1(0, 0)); k(qk2(0, 0))
    k("s_nop 11")
    if PRIO == 'attn': k("s_setprio 2")
    k(".p2align 6\nL_at_loop:")
    def M_(s):
        if PRIO == 'dyn': k("s_setprio 2")
        k(s)
        if PRIO == 'dyn': k("s_setprio 0")
    dmas = None
    for t in range(8):
        p = t & 1
        for x in range(2):
            s = Sx[x]
            extra = []
            if x == 0:
                nq = (1, p); prev = (1, p ^ 1)
                k("s_waitcnt lgkmcnt(0)")
                if t == 7:
                    k("s_waitcnt vmcnt(0)")
                    k("s_barrier")
                    k(f"v_add_u32 v{cK}, s32, v{aK}\nv_add_u32 v{cT}, s32, v{aT}\nv_add_u32 v{cV}, s32, v{aV}")
                    k(f"s_xor_b32 s32, s32, {KVCH}")
                    for l in rdK(0, p ^ 1): k(l)
                    k(f"v_max_f32 v{T}, v{Ox[0]+10}, v{Ox[1]+10}")
                    k(f"v_cmp_lt_f32 vcc, s42, v{T}")
                    k("s_cbranch_vccnz L_at_rescale")
                    k("L_at_back:")
                    extra = kv_dma('s32')
                else:
                    extra = rdK(t + 1, p ^ 1)
            else:
                nq = (0, p ^ 1); prev = (0, p)
                k("s_waitcnt lgkmcnt(0)")
                extra = rdV((t + 1) % 8, p ^ 1)
            seq = []
            seq.append(('m', qk1(*nq)))
            seq += [('v', f"v_exp_f32 v{s+r}, v{s+r}") for r in range(0, 5)]
            seq.append(('m', pv2(*prev)))
            seq += [('v', f"v_exp_f32 v{s+r}, v{s+r}") for r in range(5, 8)]
            seq += [('v', f"v_cvt_pk_bf16_f32 v{P+r}, v{s+2*r}, v{s+2*r+1}") for r in range(0, 4)]
            seq.append(('m', qk2(*nq)))
            seq += [('v', f"v_exp_f32 v{s+r}, v{s+r}") for r in range(8, 13)]
            seq.append(('m', pv1(x, p)))
            seq += [('v', f"v_exp_f32 v{s+r}, v{s+r}") for r in range(13, 16)]
            seq += [('v', f"v_cvt_pk_bf16_f32 v{P+r}, v{s+2*r}, v{s+2*r+1}") for r in range(4, 8)]
            ei = 0
            for idx, (ty, ins) in enumerate(seq):
                if ty == 'm': M_(ins)
                else: k(ins)
                if ei < len(extra) and idx >= 0 and (len(extra) <= 2 or idx % 2 == 0 or extra[ei].startswith('s_')):
                    k(extra[ei]); ei += 1
            assert ei == len(extra)
    k(f"""
    s_add_u32 s35, s35, 1
    s_cmp_ge_u32 s35, 6
    s_cselect_b32 s38, 0, s38
    s_cmp_lt_u32 s35, 8
    s_cbranch_scc1 L_at_loop
    """)
    k(pv2(1, 1))
    stamp(k, 2)
    k("L_at_final:")
    k(f"""
    s_setprio 0
    v_bfe_u32 v9, v0, 4, 1
    v_mul_u32_u24 v2, {OT}, v9
    v_and_b32 v9, 15, v0
    v_lshl_add_u32 v2, v9, 4, v2
    v_mov_b32 v10, {BIG}
    v_cndmask_b32 v11, v10, v2, s[40:41]
    v_lshrrev_b32 v9, 5, v0
    v_lshl_add_u32 v2, v9, 8, v2
    s_lshl_b32 s34, s28, 4
    s_lshl_b32 s3, s24, 2
    s_add_u32 s34, s34, s3
    s_mul_i32 s34, s34, {OT}
    s_add_u32 s34, s34, {O_OFF}
    s_lshr_b32 s3, s27, 2
    s_lshl_b32 s3, s3, 8
    s_and_b32 s33, s27, 3
    s_lshl_b32 s33, s33, 2
    s_add_u32 s33, s33, s3
    s_add_u32 s33, s33, 16384
    s_add_u32 s33, s33, s34
    s_lshl_b32 s3, s27, 9
    s_add_u32 s34, s34, s3
    s_add_u32 s44, s34, {2 * OT}
    s_add_u32 s43, s33, {2 * OT}
    s_mov_b32 s45, {f32(2.0**-100)}
    s_mov_b32 s46, {f32(2.0**120)}
    s_waitcnt lgkmcnt(0)
    v_mov_b32 v{T}, 0
    """)
    for x in range(2):
        for r in range(10): k(f"v_fma_f32 v{T}, v{Ox[x]+r}, 0, v{T}")
    k(f"""
    v_min_f32 v{T+1}, v{Ox[0]+10}, v{Ox[1]+10}
    v_max_f32 v{T+2}, v{Ox[0]+10}, v{Ox[1]+10}
    v_fma_f32 v{T}, v{Ox[0]+10}, 0, v{T}
    v_fma_f32 v{T}, v{Ox[1]+10}, 0, v{T}
    v_cmp_u_f32 vcc, v{T}, v{T}
    v_cmp_gt_f32 s[48:49], s45, v{T+1}
    v_cmp_lt_f32 s[50:51], s46, v{T+2}
    s_nop 3
    s_or_b64 s[48:49], vcc, s[48:49]
    s_or_b64 s[48:49], s[48:49], s[50:51]
    s_cbranch_scc1 L_at_fallback
L_at_store:
    """)
    for x in range(2):
        o = Ox[x]
        k(f"v_rcp_f32 v{T}, v{o+10}\ns_nop 0")
        for r in range(10): k(f"v_mul_f32 v{o+r}, v{o+r}, v{T}")
        for r in range(5): k(f"v_cvt_pk_bf16_f32 v{o+r}, v{o+2*r}, v{o+2*r+1}")
        k(f"buffer_store_dwordx4 {vr(o,4)}, v2, s[20:23], s{34 if x == 0 else 44} offen")
        k(f"buffer_store_dword v{o+4}, v11, s[20:23], s{33 if x == 0 else 43} offen")
    stamp(k, 3)
    if STAMP: k("s_waitcnt vmcnt(0)")
    stamp(k, 4); stamp_rt(k, 6)
    stamp_out(k, 7, 24, vt=140)
    k("s_endpgm")
    k("L_at_rescale:")
    k(pv2(1, 0))
    k("s_nop 15")
    for r in range(4): k(f"v_mov_b32 v{P+4+r}, 0")
    for x in range(2):
        o = Ox[x]
        k(f"""
        v_frexp_exp_i32_f32 v{T}, v{o+10}
        v_add_u32 v{T}, {int(MARGIN)}, v{T}
        v_max_i32 v{T}, 0, v{T}
        v_cvt_f32_i32 v{T}, v{T}
        v_add_f32 v{T}, v{T}, v{M[x]}
        v_mov_b32 v{T+2}, v{M[x]}
        """)
        set_shift(x, T, T + 1)
        k(f"v_sub_f32 v{T+2}, v{T+2}, v{M[x]}")
        k(f"v_cvt_i32_f32 v{T+3}, v{T+2}")
        for r in range(11): k(f"v_ldexp_f32 v{o+r}, v{o+r}, v{T+3}")
        if x == 0:
            for r in range(16): k(f"v_add_f32 v{Sx[0]+r}, v{Sx[0]+r}, v{T+2}")
    k("s_nop 3\ns_branch L_at_back")
    k("L_at_fallback:")
    k(f"s_mov_b32 s29, s31\ns_mov_b32 s35, 0\ns_mov_b32 s47, 0")
    for x in range(2):
        k(f"v_mov_b32 v{Q2[x]+1}, 0\nv_mov_b32 v{M[x]}, {f32(-3.0e38)}")
        for r in range(16): k(f"v_mov_b32 v{Ox[x]+r}, 0")
    k(f"""
L_at_fb_loop:
    s_lshl_b32 s3, s47, 10
    s_add_u32 s48, s29, s3
    s_mul_i32 s3, s47, 1536
    s_add_u32 s49, s29, s3
    buffer_load_dwordx4 {vr(K1[0],4)}, v{aK}, s[20:23], s48 offen
    buffer_load_ushort v{K2[0]}, v{aT}, s[20:23], s49 offen
    buffer_load_dwordx4 {vr(V0[0],4)}, v{aV}, s[20:23], s49 offen
    buffer_load_dwordx4 {vr(V1[0],4)}, v{aV}, s[20:23], s49 offen offset:768
    s_waitcnt vmcnt(0)
    """)
    for x in range(2):
        k(qk1(x, 0)); k(qk2(x, 0))
    k("s_nop 15")
    for x in range(2):
        s = Sx[x]; o = Ox[x]
        rowmax(x, T, T + 1)
        k(f"""v_max_f32 v{T}, v{T}, v{M[x]}
        v_sub_f32 v{T+1}, v{M[x]}, v{T}
        v_exp_f32 v{T+1}, v{T+1}
        v_mov_b32 v{M[x]}, v{T}""")
        for r in range(16): k(f"v_sub_f32 v{s+r}, v{s+r}, v{T}")
        for r in range(16): k(f"v_exp_f32 v{s+r}, v{s+r}")
        for r in range(11): k(f"v_mul_f32 v{o+r}, v{o+r}, v{T+1}")
        for r in range(8): k(f"v_cvt_pk_bf16_f32 v{P+r}, v{s+2*r}, v{s+2*r+1}")
        k("s_nop 1")
        k(pv1(x, 0)); k(pv2(x, 0))
        k("s_nop 7")
    k(f"""
    s_nop 15
    s_add_u32 s47, s47, 1
    s_cmp_lt_u32 s47, 8
    s_cbranch_scc1 L_at_fb_loop
    s_mov_b32 s47, 0
    s_add_u32 s29, s29, {KVCH}
    s_add_u32 s35, s35, 1
    s_cmp_lt_u32 s35, 8
    s_cbranch_scc1 L_at_fb_loop
    s_branch L_at_store
    """)

def ffn2(k):
    ACC = 112
    AF = 16
    BF = 52
    def acc(t, i): return vr(ACC + 4 * (9 * t + i), 4)
    k(f"""
    s_sub_u32 s24, s24, 4
    s_and_b32 s27, s25, 1
    s_and_b32 s28, s26, 3
    s_lshr_b32 s29, s25, 1
    s_lshl_b32 s29, s29, 3
    s_lshr_b32 s3, s26, 2
    s_add_u32 s29, s29, s3
    s_mul_i32 s30, s27, 72
    s_mul_i32 s3, s24, 18
    s_add_u32 s30, s30, s3
    s_mul_i32 s31, s30, {32 * 1152}
    s_mul_i32 s3, s28, 288
    s_add_u32 s31, s31, s3
    s_mul_i32 s32, s29, {4 * HT}
    s_lshl_b32 s3, s30, 10
    s_add_u32 s32, s32, s3
    s_add_u32 s32, s32, {H_OFF}
    s_add_u32 s33, s32, {HT}
    s_add_u32 s34, s32, {2 * HT}
    s_add_u32 s35, s32, {3 * HT}
    s_mul_i32 s40, s24, {3 * 9216}
    s_add_u32 s40, s40, {K2_F2}
    """)
    srd(k, 12, 4, F * D * 2)
    srd(k, 36, 6, WS_USED)
    for i in range(9):
        k(f"""
        v_add_u32 v100, {64*i}, v0
        v_mul_u32_u24 v101, 3641, v100
        v_lshrrev_b32 v101, 16, v101
        v_mul_u32_u24 v102, 18, v101
        v_sub_u32 v102, v100, v102
        v_mul_u32_u24 v101, 1152, v101
        v_lshl_add_u32 v{2+i}, v102, 4, v101
        """)
    def dma(st, q): return (f"s_add_u32 m0, s40, {st*9216 + q*1024}", f"buffer_load_dwordx4 v{2+q}, s[12:15], s31 offen lds")
    def bload(st):
        return [f"buffer_load_dwordx4 {vr(BF + 16*st + 4*t, 4)}, v1, s[36:39], s{32+t} offen offset:{st*1024}" for t in range(4)]
    for st in range(3):
        for q in range(9):
            a, b = dma(st, q); k(a); k("s_nop 0"); k(b)
        k(f"s_add_u32 s31, s31, {32*1152}")
        for l in bload(st): k(l)
    for t in range(4): k(f"s_add_u32 s{32+t}, s{32+t}, 3072")
    k(f"""
    v_lshrrev_b32 v100, 5, v0
    v_bfe_u32 v101, v0, 2, 3
    v_lshl_add_u32 v100, v100, 4, v101
    v_mul_u32_u24 v11, 288, v100
    v_and_b32 v101, 3, v0
    v_lshl_add_u32 v11, v101, 3, v11
    v_add_u32 v11, s40, v11
    """)
    for r in range(144): k(f"v_mov_b32 v{ACC+r}, 0")
    def trread(st, i, e): return f"ds_read_b64_tr_b16 {vr(AF + 4*i + 2*e, 2)}, v11 offset:{st*9216 + 8*e*288 + 32*i}"
    k("s_waitcnt vmcnt(30)")
    for i in range(9):
        k(trread(0, i, 0)); k(trread(0, i, 1))
        if i == 5: k("s_waitcnt lgkmcnt(4)")
    k("s_mov_b32 s41, 0")
    if PRIO in ('ffn', 'dyn'): k("s_setprio 1")
    stamp(k, 1)
    if STAMP: k("s_waitcnt lgkmcnt(0)")
    k(".p2align 6\nL_f2_loop:\ns_barrier")
    dma_plan = {2: [0], 3: [1], 4: [2, 3], 5: [4], 6: [5, 6], 7: [7], 8: [8]}
    for st in range(3):
        for i in range(9):
            if i == 0: k("s_waitcnt vmcnt(17) lgkmcnt(4)")
            else: k("s_waitcnt lgkmcnt(4)")
            qs = dma_plan.get(i, [])
            for t in range(4):
                k(f"v_mfma_f32_16x16x32_bf16 {acc(t,i)}, {vr(AF+4*i,4)}, {vr(BF+16*st+4*t,4)}, {acc(t,i)}")
                if t == 0 and len(qs) > 0: k(dma(st, qs[0])[0])
                if t == 1 and len(qs) > 0: k(dma(st, qs[0])[1])
                if t == 2 and len(qs) > 1: k(dma(st, qs[1])[0])
                if t == 3 and len(qs) > 1: k(dma(st, qs[1])[1])
            k(trread((st + 1) % 3, i, 0)); k(trread((st + 1) % 3, i, 1))
        k(f"s_add_u32 s31, s31, {32*1152}")
        for l in bload(st): k(l)
    for t in range(4): k(f"s_add_u32 s{32+t}, s{32+t}, 3072")
    k(f"""
    s_add_u32 s41, s41, 1
    s_cmp_ge_u32 s41, 5
    s_cselect_b32 s14, 0, s14
    s_cselect_b32 s38, 0, s38
    s_cmp_lt_u32 s41, 6
    s_cbranch_scc1 L_f2_loop
    s_setprio 0
    """)
    stamp(k, 2)
    k("s_waitcnt vmcnt(0) lgkmcnt(0)\nv_add_u32 v11, s40, v1\ns_nop 7")
    for w in range(4):
        k(f"s_cmp_lg_u32 s24, {w}\ns_cbranch_scc1 L_f2_w{w}")
        for j in range(3):
            t = (w + 1 + j) & 3
            for i in range(9):
                k(f"ds_write_b128 v11, {acc(t,i)} offset:{j*9216 + i*1024}")
        if w != 0:
            k("s_waitcnt lgkmcnt(0)")
            for r in range(36): k(f"v_mov_b32 v{ACC+r}, v{ACC+36*w+r}")
        k(f"L_f2_w{w}:")
    k("s_waitcnt lgkmcnt(0)\ns_barrier")
    for j in range(3):
        k(f"""s_sub_u32 s3, s24, {1+j}
        s_and_b32 s3, s3, 3
        s_mul_i32 s3, s3, {3*9216}
        s_add_u32 s3, s3, {K2_F2 + j*9216}
        v_add_u32 v{12+j}, s3, v1""")
    for j in range(3):
        for i in range(9):
            k(f"ds_read_b128 {vr(ACC + 36*(j+1) + 4*i, 4)}, v{12+j} offset:{i*1024}")
        k("s_waitcnt lgkmcnt(0)")
    k(f"""
    s_lshl_b32 s3, s29, 2
    s_add_u32 s3, s3, s24
    s_mul_i32 s3, s3, {PT}
    s_mul_i32 s42, s27, {PHALF}
    s_add_u32 s42, s42, s3
    s_mul_i32 s3, s28, 9216
    s_add_u32 s42, s42, s3
    s_add_u32 s42, s42, {P_OFF}
    s_add_u32 s43, s42, 4096
    s_add_u32 s44, s42, 8192
    """)
    for i in range(9):
        for j in range(3):
            for r in range(0, 4, 2):
                a = ACC + 4 * i + r
                k(f"v_pk_add_f32 {vr(a,2)}, {vr(a,2)}, {vr(a + 36*(j+1), 2)}")
        k(f"buffer_store_dwordx4 {vr(ACC+4*i,4)}, v1, s[20:23], s{42 + i//4} offen offset:{(i%4)*1024}")
    stamp(k, 3)
    if STAMP: k("s_waitcnt vmcnt(0)\ns_add_u32 s24, s24, 4")
    stamp(k, 4); stamp_rt(k, 6)
    stamp_out(k, 7, 24, vt=100)

K3_REG = 20480
def k3_out():
    k = K('k3_kernel')
    ACC = 128
    BF = 24
    AF = 72
    PP = 96
    XR = 224
    TM = 232
    def acc(t, i): return vr(ACC + 4 * (6 * t + i), 4)
    k(f"""
    s_cmp_ge_u32 s2, 192
    s_cbranch_scc1 L_k3_end
    s_load_dwordx2 s[4:5], s[0:1], {KA_WO}
    s_load_dwordx2 s[6:7], s[0:1], {KA_WS}
    s_load_dwordx2 s[8:9], s[0:1], {KA_X}
    s_load_dwordx2 s[10:11], s[0:1], {KA_OUT}
    v_lshrrev_b32 v2, 6, v0
    v_and_b32 v0, 63, v0
    v_readfirstlane_b32 s24, v2
    v_lshlrev_b32 v1, 4, v0
    s_and_b32 s3, s2, 7
    s_lshr_b32 s26, s2, 3
    s_mul_i32 s27, s26, 43
    s_lshr_b32 s27, s27, 8
    s_mul_i32 s28, s27, 6
    s_sub_u32 s28, s26, s28
    s_lshl_b32 s25, s3, 2
    s_add_u32 s25, s25, s27
    """)
    assert all((r * 43) >> 8 == r // 6 for r in range(24))
    assert all((s * 5462) >> 16 == s // 12 for s in range(384))
    for i in range(6):
        k(f"""
        v_add_u32 v{TM}, {64*i}, v0
        v_mul_u32_u24 v{TM+1}, 5462, v{TM}
        v_lshrrev_b32 v{TM+1}, 16, v{TM+1}
        v_mul_u32_u24 v{TM+2}, 12, v{TM+1}
        v_sub_u32 v{TM+2}, v{TM}, v{TM+2}
        v_lshrrev_b32 v{TM+3}, 4, v{TM+1}
        v_lshl_add_u32 v{TM+4}, v{TM+3}, 1, v{TM+1}
        v_mul_u32_u24 v{TM+4}, 1152, v{TM+4}
        v_lshl_add_u32 v{2+i}, v{TM+2}, 4, v{TM+4}
        v_lshlrev_b32 v{TM+4}, 3, v{TM+3}
        v_and_b32 v{TM+5}, 4, v{TM+1}
        v_add_u32 v{TM+4}, v{TM+4}, v{TM+5}
        v_bfe_u32 v{TM+5}, v{TM+1}, 3, 1
        v_lshl_add_u32 v{TM+4}, v{TM+5}, 1, v{TM+4}
        v_bfe_u32 v{TM+5}, v{TM+1}, 1, 1
        v_add_u32 v{TM+4}, v{TM+4}, v{TM+5}
        v_mul_u32_u24 v{TM+4}, 18, v{TM+4}
        v_and_b32 v{TM+5}, 1, v{TM+1}
        v_add3_u32 v{TM+4}, v{TM+4}, v{TM+5}, 16
        v_mul_u32_u24 v{TM+4}, 1152, v{TM+4}
        v_lshl_add_u32 v{8+i}, v{TM+2}, 4, v{TM+4}
        """)
    k("s_waitcnt lgkmcnt(0)")
    srd(k, 12, 4, D * D * 2)
    srd(k, 20, 6, WS_USED)
    srd(k, 16, 8, S * D * 2)
    srd(k, 36, 10, S * D * 2)
    k(f"""
    s_mul_i32 s40, s24, {K3_REG}
    s_mul_i32 s30, s28, 192
    s_mul_i32 s31, s24, {3 * 36 * 1152}
    s_add_u32 s31, s31, s30
    """)
    def dmas(j, vbase, soff):
        for q in range(6):
            k(f"s_add_u32 m0, s40, {j*6144 + q*1024}\ns_nop 0\nbuffer_load_dwordx4 v{vbase+q}, s[12:15], {soff} offen lds")
    dmas(0, 2, 's31')
    k("s_cmp_eq_u32 s24, 5\ns_cbranch_scc1 L_k3_tail")
    for j in (1, 2):
        k(f"s_add_u32 s31, s31, {36*1152}")
        dmas(j, 2, 's31')
    k("s_branch L_k3_join\nL_k3_tail:")
    dmas(1, 8, 's30')
    k(f"s_add_u32 s30, s30, {288*1152}")
    dmas(2, 8, 's30')
    k("L_k3_join:")
    k(f"""
    s_mul_i32 s32, s25, {4 * OT}
    s_mul_i32 s3, s24, 3072
    s_add_u32 s32, s32, s3
    s_add_u32 s32, s32, {O_OFF}
    s_add_u32 s33, s32, {OT}
    s_add_u32 s34, s32, {2 * OT}
    s_add_u32 s35, s32, {3 * OT}
    """)
    for j in range(3):
        for t in range(4):
            k(f"buffer_load_dwordx4 {vr(BF + 16*j + 4*t, 4)}, v1, s[20:23], s{32+t} offen offset:{j*1024}")
    k(f"""
    s_mul_i32 s42, s25, {4 * PT}
    s_mul_i32 s3, s28, 6
    s_add_u32 s3, s3, s24
    s_lshl_b32 s43, s3, 10
    s_add_u32 s42, s42, s43
    s_add_u32 s42, s42, {P_OFF}
    s_lshl_b32 s44, s3, 5
    s_mul_i32 s3, s25, {64 * 1152}
    s_add_u32 s44, s44, s3
    v_and_b32 v{TM}, 15, v0
    v_mul_u32_u24 v14, 1152, v{TM}
    v_lshrrev_b32 v{TM}, 4, v0
    v_lshl_add_u32 v14, v{TM}, 3, v14
    """)
    for t in range(4):
        for hh in range(2):
            k(f"s_add_u32 s3, s42, {t*PT + hh*PHALF}")
            k(f"buffer_load_dwordx4 {vr(PP + 8*t + 4*hh, 4)}, v1, s[20:23], s3 offen")
    for t in range(4):
        k(f"s_add_u32 s{46+t}, s44, {t*16*1152}")
        k(f"buffer_load_dwordx2 {vr(XR + 2*t, 2)}, v14, s[16:19], s{46+t} offen")
    k(f"""
    v_lshrrev_b32 v{TM}, 5, v0
    v_bfe_u32 v{TM+1}, v0, 2, 3
    v_lshl_add_u32 v{TM}, v{TM}, 4, v{TM+1}
    v_mul_u32_u24 v15, 192, v{TM}
    v_and_b32 v{TM+1}, 3, v0
    v_lshl_add_u32 v15, v{TM+1}, 3, v15
    v_add_u32 v15, s40, v15
    """)
    for j in range(3):
        k(f"s_waitcnt vmcnt({12 + 4*(2-j)})")
        for i in range(6):
            for e in range(2):
                k(f"ds_read_b64_tr_b16 {vr(AF + 4*i + 2*e, 2)}, v15 offset:{j*6144 + 8*e*192 + 32*i}")
        for i in range(6):
            k(f"s_waitcnt lgkmcnt({2*(5-i)})")
            for t in range(4):
                c = '0' if j == 0 else acc(t, i)
                k(f"v_mfma_f32_16x16x32_bf16 {acc(t,i)}, {vr(AF+4*i,4)}, {vr(BF+16*j+4*t,4)}, {c}")
    k("v_add_u32 v15, s40, v1\ns_nop 7")
    for w in range(6):
        k(f"s_cmp_lg_u32 s24, {w}\ns_cbranch_scc1 L_k3_w{w}")
        for j in range(5):
            i = (w + 1 + j) % 6
            for t in range(4):
                k(f"ds_write_b128 v15, {acc(t,i)} offset:{j*4096 + t*1024}")
        for t in range(4):
            for r in range(4): k(f"v_mov_b32 v{BF+4*t+r}, v{ACC + 4*(6*t+w) + r}")
        k(f"L_k3_w{w}:")
    k("s_waitcnt lgkmcnt(0)\ns_barrier")
    for j in range(5):
        k(f"""s_add_u32 s3, s24, {5-j}
        s_cmp_ge_u32 s3, 6
        s_cselect_b32 s45, 6, 0
        s_sub_u32 s3, s3, s45
        s_mul_i32 s3, s3, {K3_REG}
        s_add_u32 s3, s3, {j*4096}
        v_add_u32 v{2+j}, s3, v1""")
    for j in range(5):
        for t in range(4):
            k(f"ds_read_b128 {vr(ACC + 16*j + 4*t, 4)}, v{2+j} offset:{t*1024}")
        if j == 2: k("s_waitcnt lgkmcnt(4)")
    k("s_waitcnt vmcnt(0)\ns_mov_b32 s45, 0xffff0000")
    for t in range(4):
        b = BF + 4 * t
        for r in (0, 2):
            k(f"v_pk_add_f32 {vr(b+r,2)}, {vr(b+r,2)}, {vr(PP+8*t+r,2)}")
            k(f"v_pk_add_f32 {vr(b+r,2)}, {vr(b+r,2)}, {vr(PP+8*t+4+r,2)}")
        k(f"""v_lshlrev_b32 v{TM}, 16, v{XR+2*t}
        v_and_b32 v{TM+1}, s45, v{XR+2*t}
        v_lshlrev_b32 v{TM+2}, 16, v{XR+2*t+1}
        v_and_b32 v{TM+3}, s45, v{XR+2*t+1}
        v_pk_add_f32 {vr(b,2)}, {vr(b,2)}, {vr(TM,2)}
        v_pk_add_f32 {vr(b+2,2)}, {vr(b+2,2)}, {vr(TM+2,2)}""")
    k("s_waitcnt lgkmcnt(0)")
    for t in range(4):
        b = BF + 4 * t
        for j in range(5):
            for r in (0, 2):
                k(f"v_pk_add_f32 {vr(b+r,2)}, {vr(b+r,2)}, {vr(ACC+16*j+4*t+r,2)}")
        k(f"v_cvt_pk_bf16_f32 v{b}, v{b}, v{b+1}\nv_cvt_pk_bf16_f32 v{b+1}, v{b+2}, v{b+3}")
        k(f"buffer_store_dwordx2 {vr(b,2)}, v14, s[36:39], s{46+t} offen")
    k("L_k3_end:\ns_endpgm")
    return k, dict(vgpr=240, accum=240, grid=192, block=384, lds=6 * K3_REG)
```

```python
import sys, math
from asmlib import *

S, D, F, H, DH = 2048, 576, 4608, 32, 18
LOG2E = 1.4426950408889634
QSCALE = DH ** -0.5 * LOG2E
KA_X, KA_WQKV, KA_WO, KA_BX, KA_WG, KA_WU, KA_WD, KA_OUT, KA_DBG, KA_WS = [8 * i for i in range(10)]
XN_OFF = 0x0
QF_OFF = 0x240000
KV_OFF = 0x440000
H_OFF = 0x940000
O_OFF = 0x1B40000
P_OFF = 0x1D80000
WS_USED = 0x2680000
KVCH = 20480
HT = 144 * 1024
OT = 18 * 1024
BIG = '0x80000000'

import os
STAMP = int(os.environ.get('STAMP', '0'))
def stamp(k, i):
    if STAMP: k(f"s_memtime s[{70+2*i}:{71+2*i}]")
def stamp_rt(k, i):
    if STAMP: k(f"s_memrealtime s[{70+2*i}:{71+2*i}]")
def stamp_loop(k, vreg, cnt_sgpr):
    if STAMP == 2:
        k(f"s_memtime s[64:65]\ns_waitcnt lgkmcnt(0)\nv_mov_b32 v{vreg-1}, s64\nv_cmp_eq_u32 vcc, s{cnt_sgpr}, v0\ns_nop 1\nv_cndmask_b32 v{vreg}, v{vreg}, v{vreg-1}, vcc")
def stamp_out(k, n, wave_sgpr, vt=20):
    if not STAMP: return
    k(f"""s_load_dwordx2 s[66:67], s[0:1], {KA_WS}
    s_lshl_b32 s68, s2, 3
    s_add_u32 s68, s68, s{wave_sgpr}
    s_lshl_b32 s68, s68, 6
    s_add_u32 s68, s68, 0x4000000
    s_waitcnt lgkmcnt(0)
    s_add_u32 s66, s66, s68
    s_addc_u32 s67, s67, 0
    v_mov_b32 v{vt}, 0""")
    for i in range(n):
        k(f"v_mov_b32 v{vt+1}, s{70+2*i}\nglobal_store_dword v{vt}, v{vt+1}, s[66:67] offset:{4*i}\ns_nop 1")

def k0_ln():
    k = K('ln_kernel')
    k(f"""
    s_cmp_ge_u32 s2, 256
    s_cbranch_scc1 L_ln_end
    s_load_dwordx2 s[4:5], s[0:1], {KA_X}
    s_load_dwordx2 s[6:7], s[0:1], {KA_WS}
    v_and_b32 v1, 31, v0
    v_lshrrev_b32 v2, 5, v0
    s_lshl_b32 s3, s2, 3
    v_add_u32 v2, s3, v2
    v_mul_u32_u24 v3, 1152, v2
    v_lshl_add_u32 v3, v1, 4, v3
    v_cmp_gt_u32 vcc, 24, v1
    v_mov_b32 v4, {BIG}
    v_lshrrev_b32 v5, 5, v2
    v_cndmask_b32 v3, v4, v3, vcc
    s_waitcnt lgkmcnt(0)
    """)
    srd(k, 8, 4, S * D * 2)
    k("""
    buffer_load_dwordx4 v[8:11], v3, s[8:11], 0 offen
    buffer_load_dwordx4 v[12:15], v3, s[8:11], 0 offen offset:384
    buffer_load_dwordx4 v[16:19], v3, s[8:11], 0 offen offset:768
    """)
    srd(k, 12, 6, WS_USED)
    k(f"""
    v_mul_u32_u24 v5, 36864, v5
    v_and_b32 v6, 31, v2
    v_lshl_add_u32 v5, v6, 4, v5
    v_lshl_add_u32 v5, v1, 9, v5
    v_cndmask_b32 v5, v4, v5, vcc
    s_mov_b32 s16, {XN_OFF}
    s_mov_b32 s17, {XN_OFF + 12288}
    s_mov_b32 s18, {XN_OFF + 24576}
    s_mov_b32 s19, 0xffff0000
    s_waitcnt vmcnt(0)
    """)
    for i in range(12):
        k(f"v_lshlrev_b32 v{20+2*i}, 16, v{8+i}")
        k(f"v_and_b32 v{21+2*i}, s19, v{8+i}")
    def reduce32(r, t):
        for n in (8, 4, 2, 1):
            k("s_nop 1")
            k(f"v_add_f32_dpp v{r}, v{r}, v{r} row_ror:{n} row_mask:0xf bank_mask:0xf")
        k(f"v_mov_b32 v{t}, v{r}")
        k("s_nop 1")
        k(f"v_permlane16_swap_b32 v{r}, v{t}")
        k("s_nop 1")
        k(f"v_add_f32 v{r}, v{r}, v{t}")
    for i in range(4):
        k(f"v_add_f32 v{44+i}, v{20+i}, v{24+i}")
    for j in range(2, 6):
        for i in range(4):
            k(f"v_add_f32 v{44+i}, v{44+i}, v{20+4*j+i}")
    k("v_add_f32 v44, v44, v45\nv_add_f32 v46, v46, v47\nv_add_f32 v44, v44, v46")
    reduce32(44, 45)
    k(f"v_mul_f32 v44, {f32(1.0/D)}, v44")
    for i in range(4):
        k(f"v_sub_f32 v{52+i}, v{20+i}, v44")
    for i in range(4):
        k(f"v_mul_f32 v{48+i}, v{52+i}, v{52+i}")
    for j in range(1, 6):
        for i in range(4):
            k(f"v_sub_f32 v{52+i}, v{20+4*j+i}, v44")
        for i in range(4):
            k(f"v_fmac_f32 v{48+i}, v{52+i}, v{52+i}")
    k("v_add_f32 v48, v48, v49\nv_add_f32 v50, v50, v51\nv_add_f32 v48, v48, v50")
    k("v_cndmask_b32 v48, 0, v48, vcc")
    reduce32(48, 49)
    k(f"""
    v_mul_f32 v48, {f32(1.0/D)}, v48
    v_cvt_pk_bf16_f32 v44, v44, v44
    v_cvt_pk_bf16_f32 v48, v48, v48
    v_and_b32 v44, s19, v44
    v_and_b32 v48, s19, v48
    v_add_f32 v48, {f32(1e-5)}, v48
    v_cvt_pk_bf16_f32 v48, v48, v48
    v_and_b32 v48, s19, v48
    v_sqrt_f32 v48, v48
    s_nop 0
    v_cvt_pk_bf16_f32 v48, v48, v48
    v_and_b32 v48, s19, v48
    v_rcp_f32 v48, v48
    """)
    for i in range(24):
        k(f"v_sub_f32 v{20+i}, v{20+i}, v44")
    for i in range(12):
        k(f"v_cvt_pk_bf16_f32 v{8+i}, v{20+2*i}, v{21+2*i}")
    for i in range(12):
        k(f"v_lshlrev_b32 v{20+2*i}, 16, v{8+i}")
        k(f"v_and_b32 v{21+2*i}, s19, v{8+i}")
    for i in range(24):
        k(f"v_mul_f32 v{20+i}, v{20+i}, v48")
    for i in range(12):
        k(f"v_cvt_pk_bf16_f32 v{8+i}, v{20+2*i}, v{21+2*i}")
    k("""
    buffer_store_dwordx4 v[8:11], v5, s[12:15], s16 offen
    buffer_store_dwordx4 v[12:15], v5, s[12:15], s17 offen
    buffer_store_dwordx4 v[16:19], v5, s[12:15], s18 offen
L_ln_end:
    s_endpgm
    """)
    return k, dict(vgpr=56, accum=56, grid=256, block=256, lds=0)

K1_UP = 18432 + 128
K1_QKV = K1_UP + 18432
K1_STAGE = K1_QKV + 64 * 192
K1_LDS = 3 * K1_STAGE
def k1_gemm():
    k = K('g1_kernel')
    PD = 4
    AF = 128
    XF = 172
    def acc(i, tt):
        if i < 7: return vr(32 + 32 * i + 16 * tt, 16)
        return ar(32 * (i - 7) + 16 * tt, 16)
    k(f"""
    s_cmp_ge_u32 s2, 256
    s_cbranch_scc1 L_g1_end""")
    stamp(k, 0); stamp_rt(k, 5)
    k(f"""
    s_load_dwordx2 s[4:5], s[0:1], {KA_WQKV}
    s_load_dwordx4 s[8:11], s[0:1], {KA_WG}
    s_load_dwordx2 s[6:7], s[0:1], {KA_WS}
    v_lshrrev_b32 v20, 6, v0
    v_and_b32 v0, 63, v0
    v_readfirstlane_b32 s24, v20
    s_and_b32 s25, s2, 7
    s_lshl_b32 s25, s25, 2
    s_bfe_u32 s3, s2, 0x20003
    s_add_u32 s25, s25, s3
    s_lshr_b32 s26, s2, 5
    v_lshlrev_b32 v1, 4, v0
    """)
    for i in range(9):
        k(f"""
        v_add_u32 v20, {64*i}, v0
        v_mul_u32_u24 v21, 3641, v20
        v_lshrrev_b32 v21, 16, v21
        v_mul_u32_u24 v22, 18, v21
        v_sub_u32 v22, v20, v22
        v_mul_u32_u24 v21, 9216, v21
        v_lshl_add_u32 v{2+i}, v22, 4, v21
        """)
    assert all((s * 3641) >> 16 == s // 18 for s in range(576))
    assert all((s * 5462) >> 16 == s // 12 for s in range(192))
    k(f"v_mov_b32 v25, {BIG}")
    for i in range(3):
        k(f"""
        v_add_u32 v20, {64*i}, v0
        v_mul_u32_u24 v21, 5462, v20
        v_lshrrev_b32 v21, 16, v21
        v_mul_u32_u24 v22, 12, v21
        v_sub_u32 v22, v20, v22
        v_lshrrev_b32 v23, 1, v22
        v_mul_u32_u24 v23, 1152, v23
        v_and_b32 v24, 1, v22
        v_lshl_add_u32 v23, v24, 4, v23
        v_sub_u32 v24, 8, v22
        v_mul_u32_u24 v24, 1152, v24
        v_add_u32 v24, 32, v24
        v_cmp_gt_u32 vcc, 6, v22
        v_mul_u32_u24 v21, 3456, v21
        s_nop 0
        v_cndmask_b32 v23, v24, v23, vcc
        v_cmp_gt_u32 vcc, 9, v22
        v_add_u32 v23, v23, v21
        s_nop 0
        v_cndmask_b32 v{11+i}, v25, v23, vcc
        """)
    k(f"""
    s_waitcnt lgkmcnt(0)
    s_cmp_lt_u32 s24, 2
    s_cselect_b32 s12, s8, s10
    s_cselect_b32 s13, s9, s11
    s_and_b32 s13, s13, 0xffff
    s_mov_b32 s14, {D * F * 2}
    s_mov_b32 s15, 0x20000
    """)
    srd(k, 16, 4, D * 3 * D * 2)
    srd(k, 20, 6, WS_USED)
    srd(k, 36, 6, WS_USED)
    k(f"""
    s_and_b32 s3, s24, 1
    s_mul_i32 s27, s3, {32 * 9216}
    s_mul_i32 s40, s25, 288
    s_add_u32 s27, s27, s40
    s_mul_i32 s28, s24, {16 * 3456}
    s_mul_i32 s40, s25, 36
    s_add_u32 s28, s28, s40
    s_lshr_b32 s40, s24, 1
    s_mul_i32 s29, s40, {K1_UP}
    s_mul_i32 s40, s3, 9216
    s_add_u32 s29, s29, s40
    s_mul_i32 s30, s24, 3072
    s_add_u32 s30, s30, {K1_QKV}
    s_lshl_b32 s33, s26, 3
    s_lshl_b32 s40, s24, 1
    s_add_u32 s33, s33, s40
    s_mul_i32 s33, s33, 36864
    s_add_u32 s33, s33, {XN_OFF}
    s_add_u32 s34, s33, 36864
    """)
    def dma(q):
        if q < 9:
            return (f"s_add_u32 m0, s41, {q*1024}", f"buffer_load_dwordx4 v{2+q}, s[12:15], s27 offen lds")
        q -= 9
        return (f"s_add_u32 m0, s42, {q*1024}", f"buffer_load_dwordx4 v{11+q}, s[16:19], s28 offen lds")
    def xload(s):
        return [f"buffer_load_dwordx4 {ar(XF + 8*s, 4)}, v1, s[36:39], s33 offen offset:{s*1024}",
                f"buffer_load_dwordx4 {ar(XF + 8*s + 4, 4)}, v1, s[36:39], s34 offen offset:{s*1024}"]
    def adv_dma():
        return f"s_add_u32 s27, s27, {64*9216}\ns_add_u32 s28, s28, {64*3456}"
    stamp(k, 7)
    k("s_mov_b32 s41, s29\ns_mov_b32 s42, s30")
    for q in range(12):
        a, b = dma(q); k(a); k("s_nop 0"); k(b)
    k(adv_dma())
    k(f"s_add_u32 s41, s29, {K1_STAGE}\ns_add_u32 s42, s30, {K1_STAGE}")
    for l in xload(0): k(l)
    for q in range(6):
        a, b = dma(q); k(a); k("s_nop 0"); k(b)
    for l in xload(1): k(l)
    for q in range(6, 12):
        a, b = dma(q); k(a); k("s_nop 0"); k(b)
    for l in xload(2) + xload(3): k(l)
    k(adv_dma())
    k("s_add_u32 s33, s33, 4096\ns_add_u32 s34, s34, 4096")
    stamp(k, 8)
    k(f"""
    v_lshrrev_b32 v20, 5, v0
    v_bfe_u32 v21, v0, 4, 1
    v_bfe_u32 v22, v0, 2, 2
    v_and_b32 v23, 3, v0
    v_lshl_add_u32 v22, v20, 3, v22
    v_mul_u32_u24 v14, 288, v22
    v_mul_u32_u24 v24, {K1_UP}, v21
    v_add_u32 v14, v14, v24
    v_lshl_add_u32 v14, v23, 3, v14
    v_mul_u32_u24 v15, 192, v22
    v_add_u32 v15, {K1_QKV}, v15
    v_min_u32 v24, 2, v23
    v_lshlrev_b32 v24, 4, v24
    v_add_u32 v24, 96, v24
    v_lshlrev_b32 v26, 3, v23
    v_add_u32 v26, 64, v26
    v_cmp_eq_u32 vcc, 0, v21
    v_lshl_add_u32 v27, v21, 5, v15
    s_nop 0
    v_cndmask_b32 v24, v24, v26, vcc
    v_add_u32 v16, v15, v24
    v_lshl_add_u32 v15, v23, 3, v27
    v_mov_b32 v17, v14
    v_mov_b32 v18, v15
    v_mov_b32 v19, v16
    """)
    for r in range(32, 256): k(f"v_mov_b32 v{r}, 0")
    for r in range(128): k(f"v_accvgpr_write_b32 a{r}, 0")
    k(f"""
    s_mov_b32 s31, {2 * K1_STAGE}
    s_mov_b32 s32, {K1_STAGE}
    s_mov_b32 s35, 0""")
    stamp(k, 9)
    k("s_waitcnt vmcnt(20)")
    stamp(k, 10)
    k("s_barrier")
    def trread(n, e):
        s, i = divmod(n % 44, 11)
        dst = ar(AF + 4 * i + 2 * e, 2)
        if i < 9:
            return f"ds_read_b64_tr_b16 {dst}, v17 offset:{(16*s + 4*e) * 288 + 32*i}"
        return f"ds_read_b64_tr_b16 {dst}, v{18 + i - 9} offset:{(16*s + 4*e) * 192}"
    stamp(k, 1)
    if STAMP: k("s_waitcnt lgkmcnt(0)")
    for n in range(PD):
        k(trread(n, 0)); k(trread(n, 1))
    k(".p2align 6\nL_g1_loop:")
    k("s_add_u32 s41, s29, s31\ns_add_u32 s42, s30, s31")
    stamp_loop(k, 31, 35)
    dma_at = {}
    for q in range(12):
        n = (11 if q < 6 else 22) + (q % 6) * 2 - (0 if (q % 6) < 5 else 1)
        dma_at[n] = q
    for n in range(44):
        s, i = divmod(n, 11)
        if n + PD == 44:
            k("s_waitcnt vmcnt(18)")
            k("s_barrier")
            k("v_add_u32 v17, s32, v14\nv_add_u32 v18, s32, v15\nv_add_u32 v19, s32, v16")
        if i == 0:
            k(f"s_waitcnt vmcnt({18 if s in (0, 3) else 12}) lgkmcnt({2*(PD-1)})")
        else:
            k(f"s_waitcnt lgkmcnt({2*(PD-1)})")
        A = ar(AF + 4 * i, 4)
        for tt in range(2):
            X = ar(XF + 8 * s + 4 * tt, 4)
            if i == 10:
                k(f"v_mfma_f32_32x32x16_bf16 {acc(i,tt)}, {X}, {A}, {acc(i,tt)}")
            else:
                k(f"v_mfma_f32_32x32x16_bf16 {acc(i,tt)}, {A}, {X}, {acc(i,tt)}")
            if tt == 0 and n in dma_at: k(dma(dma_at[n])[0])
            k(trread(n + PD, tt))
            if tt == 0 and n in dma_at: k(dma(dma_at[n])[1])
        if i == 10:
            for l in xload(s): k(l)
    k(adv_dma())
    k(f"""
    s_add_u32 s33, s33, 4096
    s_add_u32 s34, s34, 4096
    s_add_u32 s31, s31, {K1_STAGE}
    s_cmp_eq_u32 s31, {3 * K1_STAGE}
    s_cselect_b32 s31, 0, s31
    s_add_u32 s32, s32, {K1_STAGE}
    s_cmp_eq_u32 s32, {3 * K1_STAGE}
    s_cselect_b32 s32, 0, s32
    s_add_u32 s35, s35, 1
    s_cmp_ge_u32 s35, 7
    s_cselect_b32 s14, 0, s14
    s_cselect_b32 s18, 0, s18
    s_cmp_ge_u32 s35, 8
    s_cselect_b32 s38, 0, s38
    s_cmp_lt_u32 s35, 9
    s_cbranch_scc1 L_g1_loop
    """)
    stamp(k, 2)
    k(f"""
    s_mov_b32 s44, {f32(-LOG2E)}
    s_mov_b32 s45, {f32(-LOG2E)}
    s_mov_b32 s46, 1.0
    s_mov_b32 s47, 1.0
    v_bfe_u32 v20, v0, 4, 1
    v_mul_u32_u24 v2, {HT}, v20
    v_lshrrev_b32 v20, 5, v0
    v_lshl_add_u32 v2, v20, 8, v2
    v_and_b32 v21, 15, v0
    v_lshl_add_u32 v2, v21, 4, v2
    s_lshl_b32 s48, s26, 4
    s_lshl_b32 s40, s24, 2
    s_add_u32 s48, s48, s40
    s_mul_i32 s48, s48, {HT}
    s_mul_i32 s40, s25, {9 * 512}
    s_add_u32 s48, s48, s40
    s_add_u32 s48, s48, {H_OFF}
    s_add_u32 s49, s48, {2 * HT}
    s_add_u32 s50, s48, 4096
    s_add_u32 s51, s49, 4096
    s_waitcnt lgkmcnt(0)
    """)
    def glu(b, i, tt):
        for r in range(4): k(f"v_pk_mul_f32 {vr(b+2*r,2)}, {vr(b+2*r,2)}, s[44:45]")
        for r in range(8): k(f"v_exp_f32 v{b+r}, v{b+r}")
        for r in range(4): k(f"v_pk_add_f32 {vr(b+2*r,2)}, {vr(b+2*r,2)}, s[46:47]")
        for r in range(8): k(f"v_rcp_f32 v{b+r}, v{b+r}")
        for r in range(4): k(f"v_pk_mul_f32 {vr(b+2*r,2)}, {vr(b+2*r,2)}, {vr(b+8+2*r,2)}")
        for r in range(4): k(f"v_cvt_pk_bf16_f32 v{b+r}, v{b+2*r}, v{b+2*r+1}")
        if i < 8:
            k(f"buffer_store_dwordx4 {vr(b,4)}, v2, s[20:23], s{48+tt} offen offset:{i*512}")
        else:
            k(f"buffer_store_dwordx4 {vr(b,4)}, v2, s[20:23], s{50+tt} offen")
    for i in range(7):
        for tt in range(2):
            glu(32 + 32 * i + 16 * tt, i, tt)
    for r in range(128): k(f"v_accvgpr_read_b32 v{32+r}, a{r}")
    for i in (7, 8):
        for tt in range(2):
            glu(32 + 32 * (i - 7) + 16 * tt, i, tt)
    k(f"""
    s_mov_b32 s44, {f32(QSCALE)}
    s_mov_b32 s45, {f32(QSCALE)}
    s_lshl_b32 s48, s25, 6
    s_lshl_b32 s40, s26, 3
    s_add_u32 s48, s48, s40
    s_lshl_b32 s40, s24, 1
    s_add_u32 s48, s48, s40
    s_lshl_b32 s48, s48, 10
    s_add_u32 s48, s48, {QF_OFF}
    s_lshl_b32 s49, s25, 3
    s_add_u32 s49, s49, s26
    s_mul_i32 s49, s49, {KVCH}
    s_add_u32 s49, s49, {KV_OFF}
    s_mul_i32 s50, s24, {4 * 768}
    s_add_u32 s50, s50, s49
    s_add_u32 s50, s50, 8192
    s_lshl_b32 s40, s24, 11
    s_add_u32 s49, s49, s40
    v_and_b32 v20, 31, v0
    v_lshrrev_b32 v21, 5, v0
    v_mul_u32_u24 v21, 384, v21
    v_subrev_u32 v22, 2, v20
    v_cmp_gt_u32 vcc, 22, v20
    v_and_b32 v23, 30, v20
    v_cmp_eq_u32 s[52:53], 24, v23
    v_cndmask_b32 v22, v22, v20, vcc
    v_lshl_add_u32 v3, v22, 4, v21
    s_or_b64 vcc, vcc, s[52:53]
    v_mov_b32 v4, 1.0
    v_mov_b32 v24, {f32(QSCALE)}
    v_cndmask_b32 v3, v25, v3, vcc
    v_cndmask_b32 v4, v4, v24, s[52:53]
    v_cmp_eq_u32 vcc, 18, v23
    v_cmp_eq_u32 s[52:53], 18, v20
    v_mov_b32 v24, 0x3f803f80
    s_nop 0
    v_cndmask_b32 v5, 0, v24, s[52:53]
    """)
    for tt in range(2):
        b = 96 + 16 * tt
        for r in range(4): k(f"v_pk_mul_f32 {vr(b+2*r,2)}, {vr(b+2*r,2)}, s[44:45]")
        for r in range(8): k(f"v_cvt_pk_bf16_f32 v{b+r}, v{b+2*r}, v{b+2*r+1}")
        k(f"buffer_store_dwordx4 {vr(b,4)}, v1, s[20:23], s48 offen offset:{tt*1024}")
        k(f"buffer_store_dwordx4 {vr(b+4,4)}, v1, s[20:23], s49 offen offset:{tt*1024}")
    for tt in range(2):
        b = 128 + 16 * tt
        for r in range(16): k(f"v_mul_f32 v{b+r}, v{b+r}, v4")
        for r in range(8): k(f"v_cvt_pk_bf16_f32 v{b+r}, v{b+2*r}, v{b+2*r+1}")
        for r in range(8): k(f"v_cndmask_b32 v{b+r}, v{b+r}, v5, vcc")
        k(f"buffer_store_dwordx4 {vr(b,4)}, v3, s[20:23], s50 offen offset:{(2*tt)*768}")
        k(f"buffer_store_dwordx4 {vr(b+4,4)}, v3, s[20:23], s50 offen offset:{(2*tt+1)*768}")
    stamp(k, 3)
    if STAMP: k("s_waitcnt vmcnt(0)")
    stamp(k, 4); stamp_rt(k, 6)
    stamp_out(k, 11, 24)
    if STAMP == 2:
        k("v_lshlrev_b32 v20, 2, v0\ns_add_u32 s66, s66, 0x100000\ns_addc_u32 s67, s67, 0\nv_cmp_gt_u32 vcc, 16, v0\ns_and_saveexec_b64 s[64:65], vcc\nglobal_store_dword v20, v31, s[66:67]")
    k("L_g1_end:\ns_endpgm")
    return k, dict(vgpr=256 + 204, accum=256, grid=256, block=256, lds=K1_LDS)

def build(kernels):
    out = ''
    for k, p in kernels:
        out += f"; @launch kernel={k.name} grid=({p['grid']},1,1) block=({p['block']},1,1) lds={p['lds']}\n"
    out += '.amdgcn_target "amdgcn-amd-amdhsa--gfx950"\n.text\n'
    seen = []
    for k, p in kernels:
        if k.name in seen: continue
        seen.append(k.name)
        out += header(k) + k.text()
    out += '.section .rodata,"a"\n'
    seen = []
    for k, p in kernels:
        if k.name in seen: continue
        seen.append(k.name)
        out += descriptor(k.name, p['vgpr'], p['accum'])
    return out

if __name__ == '__main__':
    ks = [k0_ln(), k1_gemm()]
    try:
        from gen2 import k2_attn_ffn2, k3_out
        ks += [k2_attn_ffn2(), k3_out()]
    except ImportError:
        pass
    open(sys.argv[1] if len(sys.argv) > 1 else 'out.s', 'w').write(build(ks))
```
